```python
import torch

def _softmax(x, axis=-1):
    return torch.softmax(x, dim=axis)
def _gelu(x):
    return torch.nn.functional.gelu(x, approximate="tanh")
def _silu(x):
    return torch.nn.functional.silu(x)
def _sigmoid(x):
    return torch.sigmoid(x)
def _layernorm(x, axis=-1, eps=1e-5):
    m = x.mean(dim=axis, keepdim=True)
    v = x.var(dim=axis, keepdim=True, unbiased=False)
    return (x - m) / torch.sqrt(v + eps)
def _scatter_add(tgt, idx, src, axis=0):
    return tgt.clone().index_add_(axis, idx, src)
def _segment_sum(src, seg, n):
    out = torch.zeros((n,) + src.shape[1:], dtype=src.dtype)
    return out.index_add_(0, seg, src)
def _pad(x, pw):
    flat = tuple(v for pair in reversed(pw) for v in pair)
    return torch.nn.functional.pad(x, flat)

kernel_name = 'standalone__w4a16_gemm_dequant__prompt'

def setup_inputs():

    _w = (lambda a: (lambda t: t.to(torch.bfloat16) if t.is_floating_point() else t)(torch.as_tensor(a)))
    B, S, D, F = 1, 2048, 1024, 3584
    G = 128 if 128 > 0 else D
    D = (D // G) * G
    ng = D // G
    qw = torch.randint(0, 16, (D, F)).to(torch.int32)
    return {
        "x": _w((lambda *s: torch.randn(*s, dtype=torch.bfloat16) * 0.05)(B, S, D)),
        "qw": _w(qw),
        "scales": _w(torch.abs((lambda *s: torch.randn(*s, dtype=torch.bfloat16) * 0.05)(ng, F)) + 0.01),
        "zeros": _w(torch.full((ng, F), 8.0, dtype=float)),
    }

def reference(x, qw, scales, zeros):
    B, S, D = x.shape
    ng, F = scales.shape
    G = D // ng
    s = (lambda x, n, axis: torch.repeat_interleave(x, n, dim=axis))(scales, G, axis=0)
    z = (lambda x, n, axis: torch.repeat_interleave(x, n, dim=axis))(zeros, G, axis=0)
    w = ((lambda x, dt: x.to(dt))(qw, x.dtype) - z) * s
    return x @ w
```

```python
hdr = open('standalone__w4a16_gemm_dequant__prompt.s.ref').read().split('\n')
comments = [l for l in hdr if l.startswith(';') and '@launch' not in l]
out = []
out += comments
out.append('; @launch grid=(28672,1,1) block=(64,1,1) lds=0')
out.append('''.amdgcn_target "amdgcn-amd-amdhsa--gfx950"
.text
.globl standalone__w4a16_gemm_dequant__prompt_kernel
.p2align 8
.type standalone__w4a16_gemm_dequant__prompt_kernel,@function
standalone__w4a16_gemm_dequant__prompt_kernel:
    s_cmp_ge_u32 s2, 28672
    s_cbranch_scc1 L_done
    s_load_dwordx4 s[4:7], s[0:1], 0      ; x, qw
    s_load_dwordx4 s[8:11], s[0:1], 16
    s_load_dwordx2 s[12:13], s[0:1], 32   ; out
    s_and_b32 s14, s2, 127
    s_lshr_b32 s15, s2, 7
    s_waitcnt lgkmcnt(0)
    ; SRDs
    s_mov_b32 s16, s4
    s_and_b32 s17, s5, 0xffff
    s_mov_b32 s18, 4194304
    s_mov_b32 s19, 0x20000
    s_mov_b32 s20, s6
    s_and_b32 s21, s7, 0xffff
    s_mov_b32 s22, 14680064
    s_mov_b32 s23, 0x20000
    s_mov_b32 s24, s8
    s_and_b32 s25, s9, 0xffff
    s_mov_b32 s26, 57344
    s_mov_b32 s27, 0x20000
    s_mov_b32 s28, s10
    s_and_b32 s29, s11, 0xffff
    s_mov_b32 s30, 57344
    s_mov_b32 s31, 0x20000
    s_mov_b32 s32, s12
    s_and_b32 s33, s13, 0xffff
    s_mov_b32 s34, 14680064
    s_mov_b32 s35, 0x20000
    v_and_b32 v1, 15, v0          ; l&15
    v_lshrrev_b32 v2, 4, v0       ; l>>4
    s_lshl_b32 s36, s14, 4
    v_add_u32 v3, s36, v1
    v_lshlrev_b32 v3, 11, v3
    v_lshl_add_u32 v3, v2, 4, v3
    ; n = nt*16 + (l&15)
    s_lshl_b32 s37, s15, 4
    v_add_u32 v4, s37, v1         ; n
    s_mov_b32 s38, 114688
    v_mul_lo_u32 v5, v2, s38
    v_lshl_add_u32 v5, v4, 2, v5
    v_lshlrev_b32 v6, 1, v4
    v_mov_b32 v40, 0
    v_mov_b32 v41, 0
    v_mov_b32 v42, 0
    v_mov_b32 v43, 0
    s_mov_b32 s40, 0      ; k step (0..31)
    s_mov_b32 s41, 0      ; x soffset
    s_mov_b32 s42, 0
L_loop:
    s_lshr_b32 s43, s40, 2
    s_mul_i32 s43, s43, 7168
    buffer_load_ushort v20, v6, s[24:27], s43 offen
    buffer_load_ushort v21, v6, s[28:31], s43 offen
    buffer_load_dwordx4 v[8:11], v3, s[16:19], s41 offen
''')
for j in range(8):
    out.append(f'    s_add_u32 s44, s42, {j*14336}')
    out.append(f'    buffer_load_dword v{24+j}, v5, s[20:23], s44 offen')
out.append('''    s_waitcnt vmcnt(0)
    v_lshlrev_b32 v20, 16, v20     ; s f32
    v_lshlrev_b32 v21, 16, v21     ; z f32
''')
for j in range(8):
    out.append(f'    v_cvt_f32_i32 v{24+j}, v{24+j}')
    out.append(f'    v_sub_f32 v{24+j}, v{24+j}, v21')
for j in range(0,8,2):
    out.append(f'    v_cvt_pk_bf16_f32 v{32+j//2}, v{24+j}, v{25+j}')
for j in range(0,8,2):
    out.append(f'    v_lshlrev_b32 v{24+j}, 16, v{32+j//2}')
    out.append(f'    v_and_b32 v{25+j}, 0xffff0000, v{32+j//2}')
for j in range(8):
    out.append(f'    v_mul_f32 v{24+j}, v{24+j}, v20')
for j in range(0,8,2):
    out.append(f'    v_cvt_pk_bf16_f32 v{12+j//2}, v{24+j}, v{25+j}')
out.append('''    s_nop 1
    v_mfma_f32_16x16x32_bf16 v[40:43], v[12:15], v[8:11], v[40:43]
    s_add_u32 s40, s40, 1
    s_add_u32 s41, s41, 64
    s_add_u32 s42, s42, 458752
    s_cmp_lt_u32 s40, 32
    s_cbranch_scc1 L_loop
    s_nop 15
    v_cvt_pk_bf16_f32 v44, v40, v41
    v_cvt_pk_bf16_f32 v45, v42, v43
    v_add_u32 v46, s36, v1        ; m
    s_mov_b32 s45, 7168
    v_mul_lo_u32 v46, v46, s45
    v_lshlrev_b32 v47, 3, v2      ; (l>>4)*4*2 bytes
    v_add_u32 v46, v46, v47
    s_lshl_b32 s46, s37, 1
    buffer_store_dwordx2 v[44:45], v46, s[32:35], s46 offen
L_done:
    s_endpgm
.section .rodata,"a"
.p2align 6
.amdhsa_kernel standalone__w4a16_gemm_dequant__prompt_kernel
  .amdhsa_next_free_vgpr 48
  .amdhsa_next_free_sgpr 48
  .amdhsa_accum_offset 48
  .amdhsa_group_segment_fixed_size 0
  .amdhsa_kernarg_size 56
  .amdhsa_user_sgpr_count 2
  .amdhsa_user_sgpr_kernarg_segment_ptr 1
  .amdhsa_system_sgpr_workgroup_id_x 1
.end_amdhsa_kernel''')
open('standalone__w4a16_gemm_dequant__prompt.s','w').write('\n'.join(out)+'\n')
```

```python
hdr = open('standalone__w4a16_gemm_dequant__prompt.s.ref').read().split('\n')
COMMENTS = [l for l in hdr if l.startswith(';') and '@launch' not in l and 'Override' not in l and 'grid=ceil' not in l]
KNAME = 'standalone__w4a16_gemm_dequant__prompt_kernel'

def prologue(grid, block, lds, name=KNAME):
    o = list(COMMENTS)
    o.append(f'; @launch grid=({grid},1,1) block=({block},1,1) lds={lds}')
    o.append(f'''.amdgcn_target "amdgcn-amd-amdhsa--gfx950"
.text
.globl {name}
.p2align 8
.type {name},@function
{name}:''')
    return o

def epilogue(vgpr, sgpr, accum=None, name=KNAME):
    if accum is None:
        accum = (vgpr + 3) // 4 * 4
    return f'''.section .rodata,"a"
.p2align 6
.amdhsa_kernel {name}
  .amdhsa_next_free_vgpr {vgpr}
  .amdhsa_next_free_sgpr {sgpr}
  .amdhsa_accum_offset {accum}
  .amdhsa_group_segment_fixed_size 0
  .amdhsa_kernarg_size 56
  .amdhsa_user_sgpr_count 2
  .amdhsa_user_sgpr_kernarg_segment_ptr 1
  .amdhsa_system_sgpr_workgroup_id_x 1
.end_amdhsa_kernel
'''

def srds():
    return '''    s_load_dwordx4 s[4:7], s[0:1], 0      ; x, qw
    s_load_dwordx4 s[8:11], s[0:1], 16
    s_load_dwordx4 s[12:15], s[0:1], 32
    s_load_dwordx2 s[44:45], s[0:1], 48   ; ws
    s_waitcnt lgkmcnt(0)
    s_mov_b32 s16, s4
    s_and_b32 s17, s5, 0xffff
    s_mov_b32 s18, 4194304
    s_mov_b32 s19, 0x20000
    s_mov_b32 s20, s6
    s_and_b32 s21, s7, 0xffff
    s_mov_b32 s22, 14680064
    s_mov_b32 s23, 0x20000
    s_mov_b32 s24, s8
    s_and_b32 s25, s9, 0xffff
    s_mov_b32 s26, 57344
    s_mov_b32 s27, 0x20000
    s_mov_b32 s28, s10
    s_and_b32 s29, s11, 0xffff
    s_mov_b32 s30, 57344
    s_mov_b32 s31, 0x20000
    s_mov_b32 s32, s12
    s_and_b32 s33, s13, 0xffff
    s_mov_b32 s34, 14680064
    s_mov_b32 s35, 0x20000
    s_mov_b32 s36, s14
    s_and_b32 s37, s15, 0xffff
    s_mov_b32 s38, 256
    s_mov_b32 s39, 0x20000
    s_mov_b32 s40, s44
    s_and_b32 s41, s45, 0xffff
    s_mov_b32 s42, 0x10000000
    s_mov_b32 s43, 0x20000'''
```

```python
import sys
from common import *

MAP = '4x8'
ROT = 0
for a in sys.argv[1:]:
    if a.startswith('map='): MAP = a[4:]
    if a.startswith('rot='): ROT = int(a[4:])
OUT = sys.argv[-1]

XST = 32768
NXS = 4
WBASE = NXS * XST
WST = 14336
LDS = WBASE + 2 * WST
NSTEP = 16

o = prologue(256, 512, LDS)
A = o.append
A('    s_cmp_ge_u32 s2, 256\n    s_cbranch_scc1 L_done')
A(srds())
A('    s_mov_b32 s23, 0x74fac')
A('''    s_and_b32 s46, s2, 7       ; xcd
    s_lshr_b32 s47, s2, 3      ; j 0..31''')
if MAP == '8x4':
    A('''    s_and_b32 s48, s47, 3
    s_lshl_b32 s49, s46, 2
    s_add_u32 s51, s49, s48    ; nt
    s_lshr_b32 s50, s47, 2     ; mt''')
elif MAP == '4x8':
    A('''    s_and_b32 s48, s46, 1
    s_lshl_b32 s48, s48, 2
    s_and_b32 s49, s47, 3
    s_add_u32 s50, s48, s49    ; mt
    s_lshr_b32 s48, s46, 1
    s_lshl_b32 s48, s48, 3
    s_lshr_b32 s49, s47, 2
    s_add_u32 s51, s48, s49    ; nt''')
elif MAP == '2x16':
    A('''    s_and_b32 s48, s46, 3
    s_lshl_b32 s48, s48, 1
    s_and_b32 s49, s47, 1
    s_add_u32 s50, s48, s49    ; mt
    s_lshr_b32 s48, s46, 2
    s_lshl_b32 s48, s48, 4
    s_lshr_b32 s49, s47, 1
    s_add_u32 s51, s48, s49    ; nt''')
if ROT:
    A('    s_lshl_b32 s62, s46, 1')
else:
    A('    s_mov_b32 s62, 0')
A('''    v_lshrrev_b32 v1, 6, v0
    v_and_b32 v2, 63, v0            ; lane
    v_readfirstlane_b32 s52, v1
    s_nop 3
    s_cmp_ge_u32 s52, 4
    s_cbranch_scc1 L_producer''')

ACC = 128
P = 40
Q = 84
def acc(a, T): return ACC + (a * 7 + T) * 4
A('''    ; ---- consumer ----
    v_and_b32 v3, 15, v2            ; i
    v_lshrrev_b32 v4, 4, v2         ; g
    v_lshrrev_b32 v5, 1, v3         ; i>>1
    v_xor_b32 v5, v5, v4            ; g ^ (i>>1)
    v_lshlrev_b32 v5, 4, v5
    v_lshl_add_u32 v5, v3, 7, v5    ; base_lane_h0
    v_xor_b32 v6, 64, v5            ; base_lane_h1
    s_lshl_b32 s53, s52, 13         ; w*8192
    v_add_u32 v8, s53, v5           ; x lo h0
    v_add_u32 v9, s53, v6           ; x lo h1
    v_add_u32 v10, 0x10000, v8      ; x hi h0
    v_add_u32 v11, 0x10000, v9      ; x hi h1''')
A(f'    v_add_u32 v12, {WBASE}, v5      ; W h0')
A(f'    v_add_u32 v13, {WBASE}, v6      ; W h1')
for r in range(112):
    A(f'    v_mov_b32 v{ACC + r}, 0')

def reads(t, h, base):
    xs = t % NXS
    xreg = (8 if xs < 2 else 10) + h
    xo = (xs & 1) * XST
    ws = t % 2
    l = []
    order = [('w', 0), ('x', 0), ('x', 1), ('x', 2), ('x', 3)] + [('w', T) for T in range(1, 7)]
    for k, idx in order:
        if k == 'x':
            l.append(f'    ds_read_b128 v[{base + 4*idx}:{base + 4*idx + 3}], v{xreg} offset:{xo + idx*2048}')
        else:
            r = base + 16 + 4 * idx
            l.append(f'    ds_read_b128 v[{r}:{r + 3}], v{12 + h} offset:{ws*WST + idx*2048}')
    return l

def mfmas(base):
    l = []
    for T in range(7):
        for a in range(4):
            c = acc(a, T)
            wr = base + 16 + 4 * T
            xr = base + 4 * a
            l.append(f'    v_mfma_f32_16x16x32_bf16 v[{c}:{c+3}], v[{wr}:{wr+3}], v[{xr}:{xr+3}], v[{c}:{c+3}]')
    return l

def interleave(ms, rs, every=2, start=0):
    out = []
    ri = 0
    for i, m in enumerate(ms):
        out.append(m)
        if i >= start and (i - start) % every == every - 1 and ri < len(rs):
            out.append(rs[ri]); ri += 1
    out += rs[ri:]
    return out

A('    s_barrier                      ; B_0')
for t in range(NSTEP):
    rs = reads(t, 0, P)
    if t == 0:
        for x in rs: A(x)
    else:
        A('    s_waitcnt lgkmcnt(0)')
        for x in interleave(mfmas(Q), rs, 2): A(x)
    A('    s_waitcnt lgkmcnt(0)')
    rs = reads(t, 1, Q)
    ms = mfmas(P)
    seq = interleave(ms[:16], rs, 1)
    for x in seq: A(x)
    if t < NSTEP - 1:
        A('    s_waitcnt lgkmcnt(0)')
        A(f'    s_barrier                      ; B_{t+1}')
    for x in ms[16:]: A(x)
A('    s_waitcnt lgkmcnt(0)')
for x in mfmas(Q): A(x)
A('''    s_nop 7
    s_nop 7
    s_lshl_b32 s53, s50, 8
    s_lshl_b32 s54, s52, 6
    s_add_u32 s53, s53, s54
    v_add_u32 v14, s53, v3
    s_mov_b32 s55, 7168
    v_mul_lo_u32 v14, v14, s55
    v_lshl_add_u32 v14, v4, 3, v14
    s_mul_i32 s56, s51, 224''')
for a in range(4):
    for T in range(7):
        c = acc(a, T)
        d = 16 + 2 * ((a * 7 + T) % 8)
        A(f'    v_cvt_pk_bf16_f32 v{d}, v{c}, v{c+1}')
        A(f'    v_cvt_pk_bf16_f32 v{d+1}, v{c+2}, v{c+3}')
        A(f'    buffer_store_dwordx2 v[{d}:{d+1}], v14, s[32:35], s56 offen offset:{T*32}')
    if a < 3:
        A(f'    s_add_u32 s56, s56, {16*7168}')
A('    s_endpgm')

A('''L_producer:
    s_sub_u32 s52, s52, 4           ; p
    ; x voffset
    v_lshrrev_b32 v8, 3, v2         ; r = l>>3
    v_and_b32 v9, 7, v2             ; slot
    v_lshrrev_b32 v10, 1, v8
    v_xor_b32 v9, v9, v10
    s_lshl_b32 s53, s50, 8
    s_lshl_b32 s54, s52, 6
    s_add_u32 s53, s53, s54
    v_add_u32 v8, s53, v8
    v_lshlrev_b32 v8, 11, v8
    v_lshl_add_u32 v3, v9, 4, v8
    v_xor_b32 v4, 64, v3
    v_cmp_le_u32 vcc, 28, v2
    v_subrev_u32 v8, 28, v2
    s_nop 0
    v_cndmask_b32 v8, v2, v8, vcc   ; cg
    v_cndmask_b32 v9, 0, 1, vcc     ; kb
    v_cmp_gt_u32 s[64:65], 56, v2
    s_nop 1
    v_cndmask_b32 v8, 0, v8, s[64:65]
    s_lshl_b32 s54, s52, 4
    v_lshl_add_u32 v10, v9, 3, s54
    s_mov_b32 s55, 14336
    v_mul_lo_u32 v10, v10, s55
    v_lshl_add_u32 v10, v8, 4, v10
    s_mul_i32 s55, s51, 448
    v_add_u32 v5, s55, v10
    s_lshl_b32 s54, s52, 1
    v_add_u32 v10, s54, v9          ; o
    v_lshlrev_b32 v11, 1, v8
    v_and_b32 v11, 7, v11
    v_xor_b32 v10, v10, v11
    v_lshlrev_b32 v10, 4, v10
    v_lshl_add_u32 v10, v8, 9, v10''')
A(f'    v_add_u32 v6, {WBASE}, v10')
A('''    v_xor_b32 v7, 16, v6
    s_mul_i32 s55, s51, 224
    v_lshl_add_u32 v12, v8, 3, s55
    s_lshl_b32 s58, s52, 13
    s_mov_b32 s63, s62''')
A('    s_lshr_b32 s66, s62, 1          ; group')
for gi in range(8):
    A(f'    s_mul_i32 s67, s66, 7168')
    A(f'    buffer_load_dwordx2 v[{16+4*gi}:{17+4*gi}], v12, s[24:27], s67 offen')
    A(f'    buffer_load_dwordx2 v[{18+4*gi}:{19+4*gi}], v12, s[28:31], s67 offen')
    A(f'    s_add_u32 s66, s66, 1\n    s_and_b32 s66, s66, 7')

def issue_batch(step):
    xs = step % NXS
    qs = 64 + 16 * (step % 3)
    A('    s_lshl_b32 s56, s62, 7')
    A('    s_mul_i32 s57, s62, 917504')
    for i in range(8):
        A(f'    s_add_u32 m0, s58, {xs*XST + i*1024}')
        A(f'    s_add_u32 s61, s56, {i*8*2048}')
        A(f'    buffer_load_dwordx4 v{3 + (i & 1)}, s[16:19], s61 offen lds')
    A('    s_mov_b64 exec, s[64:65]')
    for j in range(8):
        A(f'    s_add_u32 s61, s57, {j*14336}')
        A(f'    buffer_load_format_d16_xyzw v[{qs+2*j}:{qs+2*j+1}], v5, s[20:23], s61 offen')
    A('    s_mov_b64 exec, -1')
    A('    s_add_u32 s62, s62, 1\n    s_and_b32 s62, s62, 15')

def prep_scales(gi):
    sr = 16 + 4 * gi; zr = 18 + 4 * gi
    A(f'    v_lshlrev_b32 v48, 16, v{sr}')
    A(f'    v_and_b32 v49, 0xffff0000, v{sr}')
    A(f'    v_lshlrev_b32 v50, 16, v{sr+1}')
    A(f'    v_and_b32 v51, 0xffff0000, v{sr+1}')
    A(f'    v_lshlrev_b32 v52, 16, v{zr}')
    A(f'    v_and_b32 v53, 0xffff0000, v{zr}')
    A(f'    v_lshlrev_b32 v54, 16, v{zr+1}')
    A(f'    v_and_b32 v55, 0xffff0000, v{zr+1}')
    for c in range(4):
        A(f'    v_mul_f32_e64 v{52+c}, -v{52+c}, v{48+c}')
    for c in range(4):
        A(f'    v_mul_f32 v{48+c}, 0x4b800000, v{48+c}')

def dequant(step):
    qs = 64 + 16 * (step % 3)
    ws = step % 2
    if step % 2 == 0:
        prep_scales(step // 2)
    for c in range(4):
        tb = 112 + 8 * (c & 1) if False else 112
        for j in range(8):
            q = qs + 2 * j + (c >> 1)
            A(f'    v_fma_mix_f32 v{112+j}, v{q}, v{48+c}, v{52+c} op_sel:[{c&1},0,0] op_sel_hi:[1,0,0]')
        ob = 120 + 4 * (c & 1)
        for j in range(4):
            A(f'    v_cvt_pk_bf16_f32 v{ob+j}, v{112+2*j}, v{113+2*j}')
        A('    s_mov_b64 exec, s[64:65]')
        A(f'    ds_write_b128 v{6 + (c >> 1)}, v[{ob}:{ob+3}] offset:{ws*WST + c*128}')
        A('    s_mov_b64 exec, -1')

for s in range(3):
    issue_batch(s)
A('    s_waitcnt vmcnt(32)')
dequant(0)
A('    s_waitcnt lgkmcnt(0)\n    s_barrier                      ; B_0')
for t in range(NSTEP - 1):
    nxt = t + 3
    if nxt < NSTEP:
        issue_batch(nxt)
        A('    s_waitcnt vmcnt(32)')
    else:
        rem = NSTEP - 1 - (t + 1)
        A(f'    s_waitcnt vmcnt({16*rem})')
    dequant(t + 1)
    A(f'    s_waitcnt lgkmcnt(0)\n    s_barrier                      ; B_{t+1}')
A('L_done:\n    s_endpgm')
A(epilogue(256, 72))
open(OUT, 'w').write('\n'.join(o))
```

```python
import sys
from common import *
opt = dict(stamp=0, pfx=1, pfw=6, vpm=3, pfflags='')
for a in sys.argv[1:-1]:
    k, v = a.split('=')
    opt[k] = v if k in ('pfflags',) else int(v)
OUT = sys.argv[-1]
PFL = opt['pfflags'].replace('_', ' ')
XST = 32768; WBASE = 131072; WST = 16384; LDS = 163840
o = prologue(256, 512, LDS)
A = o.append
A('    s_cmp_ge_u32 s2, 256\n    s_cbranch_scc1 L_done')
A(srds())
A('''    s_mov_b32 s23, 0x74fac
    s_and_b32 s46, s2, 7       ; xcd
    s_lshr_b32 s47, s2, 3      ; j 0..31
    s_and_b32 s48, s46, 1
    s_lshl_b32 s68, s48, 2
    s_and_b32 s49, s47, 3
    s_add_u32 s50, s68, s49    ; mt
    s_lshr_b32 s48, s46, 1
    s_lshl_b32 s69, s48, 3
    s_lshr_b32 s49, s47, 2
    s_add_u32 s51, s69, s49    ; nt
    v_lshrrev_b32 v1, 6, v0
    v_and_b32 v2, 63, v0            ; lane
    v_readfirstlane_b32 s52, v1
    s_nop 3
    s_cmp_ge_u32 s52, 4
    s_cbranch_scc1 L_producer''')
ACC = 128; P = 40; Q = 84
def acc(a, T): return ACC + (a * 7 + T) * 4
stamp_n = [0]
def stamp():
    if opt['stamp']:
        k = stamp_n[0]; stamp_n[0] += 1
        A(f'    s_memtime s[{70+2*k}:{71+2*k}]')
        A(f'    s_memrealtime s[{84+2*k}:{85+2*k}]')
stamp()
if opt['pfw']:
    A('''    v_cmp_le_u32 vcc, 28, v2
    v_subrev_u32 v14, 28, v2
    s_nop 0
    v_cndmask_b32 v14, v2, v14, vcc     ; l%28 (28..35 for l>=56)
    v_cndmask_b32 v15, 0, 1, vcc
    v_lshlrev_b32 v14, 7, v14
    s_lshl_b32 s53, s47, 1
    v_add_u32 v15, s53, v15             ; row
    s_mov_b32 s54, 14336
    v_mad_u32_u24 v14, v15, s54, v14
    s_mul_i32 s53, s69, 448
    v_add_u32 v14, s53, v14
    v_cmp_gt_u32 vcc, 56, v2
    v_mov_b32 v15, 0x7ff00000
    s_nop 0
    v_cndmask_b32 v14, v15, v14, vcc
    s_mov_b32 s20, s6
    s_mov_b32 s64, s6
    s_and_b32 s65, s7, 0xffff
    s_mov_b32 s66, 14680064
    s_mov_b32 s67, 0x20000
    s_mul_i32 s61, s52, 917504''')
    for i in range((opt['pfw'] + 3) // 4):
        A(f'    s_add_u32 s53, s52, {4*i}')
        A(f'    s_cmp_ge_u32 s53, {opt["pfw"]}')
        A(f'    s_cbranch_scc1 L_pfw_done')
        A(f'    buffer_load_dword v12, v14, s[64:67], s61 offen {PFL}')
        A(f'    s_add_u32 s61, s61, {4*917504}')
    A('L_pfw_done:')
if opt['pfx']:
    A('''    v_and_b32 v16, 31, v2
    s_lshl_b32 s53, s68, 8
    s_lshl_b32 s54, s47, 5
    s_add_u32 s53, s53, s54
    v_add_u32 v16, s53, v16
    v_lshlrev_b32 v16, 11, v16
    v_lshrrev_b32 v17, 5, v2
    v_lshl_add_u32 v16, v17, 7, v16
    s_lshl_b32 s53, s52, 8''')
    A(f'    buffer_load_dword v13, v16, s[16:19], s53 offen {PFL}')
    A(f'    buffer_load_dword v13, v16, s[16:19], s53 offen offset:1024 {PFL}')
A('''    ; ---- consumer ----
    v_and_b32 v3, 15, v2            ; i
    v_lshrrev_b32 v4, 4, v2         ; g
    v_lshrrev_b32 v5, 1, v3
    v_xor_b32 v5, v5, v4
    v_lshlrev_b32 v5, 4, v5
    v_lshl_add_u32 v5, v3, 7, v5
    v_xor_b32 v6, 64, v5
    s_lshl_b32 s53, s52, 13         ; w*8192
    v_add_u32 v8, s53, v5           ; x h0
    v_add_u32 v9, s53, v6           ; x h1''')
A(f'    v_add_u32 v10, {WBASE}, v5      ; W h0')
A(f'    v_add_u32 v11, {WBASE}, v6      ; W h1')
A('    s_mov_b32 s59, 0\n    s_mov_b32 s60, s53')
for r in range(112):
    A(f'    v_mov_b32 v{ACC + r}, 0')
def reads(h, base):
    l = []
    order = [('w', 0), ('x', 0), ('x', 1), ('x', 2), ('x', 3)] + [('w', T) for T in range(1, 7)]
    for k, idx in order:
        if k == 'x':
            l.append(f'    ds_read_b128 v[{base + 4*idx}:{base + 4*idx + 3}], v{8 + h} offset:{idx*2048}')
        else:
            r = base + 16 + 4 * idx
            l.append(f'    ds_read_b128 v[{r}:{r + 3}], v{10 + h} offset:{idx*2048}')
    return l
def mfmas(base):
    l = []
    for T in range(7):
        for a in range(4):
            c = acc(a, T); wr = base + 16 + 4 * T; xr = base + 4 * a
            l.append(f'    v_mfma_f32_16x16x32_bf16 v[{c}:{c+3}], v[{wr}:{wr+3}], v[{xr}:{xr+3}], v[{c}:{c+3}]')
    return l
def interleave(ms, rs, every=2):
    out = []; ri = 0
    for i, m in enumerate(ms):
        out.append(m)
        if i % every == every - 1 and ri < len(rs):
            out.append(rs[ri]); ri += 1
    out += rs[ri:]
    return out
A('    s_barrier                      ; B_0')
stamp()
for x in reads(0, P): A(x)
A('    s_branch L_c_p2')
A('L_c_loop:')
A('    s_waitcnt lgkmcnt(0)')
for x in interleave(mfmas(Q), reads(0, P), 2): A(x)
A('L_c_p2:')
A('    s_waitcnt lgkmcnt(0)')
ms = mfmas(P)
for x in interleave(ms[:16], reads(1, Q), 1): A(x)
A(f'''    s_add_u32 s60, s60, {XST}
    s_and_b32 s60, s60, 0x1ffff
    s_add_u32 s59, s59, 1
    s_waitcnt lgkmcnt(0)
    s_barrier
    v_add_u32 v8, s60, v5
    v_add_u32 v9, s60, v6
    v_xor_b32 v10, {WST}, v10
    v_xor_b32 v11, {WST}, v11''')
for x in ms[16:22]: A(x)
if opt['pfw']:
    A(f'''    s_add_u32 s62, s59, {opt['pfw'] - 1}
    s_and_b32 s63, s62, 3
    s_cmp_lg_u32 s63, s52
    s_cbranch_scc1 L_nopf
    s_cmp_ge_u32 s62, 16
    s_cbranch_scc1 L_nopf
    buffer_load_dword v12, v14, s[64:67], s61 offen {PFL}
    s_add_u32 s61, s61, {4*917504}
L_nopf:''')
for x in ms[22:]: A(x)
A('    s_cmp_lt_u32 s59, 16\n    s_cbranch_scc1 L_c_loop')
for x in mfmas(Q): A(x)
stamp()
RS = 240
A(f'''    ; epilogue: write bf16 block to LDS image [256][{RS}]
    s_lshl_b32 s55, s52, 6
    v_add_u32 v11, s55, v3          ; row = 64w + i
    v_mul_u32_u24 v11, {RS}, v11
    v_lshl_add_u32 v11, v4, 3, v11  ; + g*8
    s_barrier
    s_nop 4''')
for a in range(4):
    for T in range(7):
        c = acc(a, T)
        d = 20 + 2 * ((a * 7 + T) % 8)
        A(f'    v_cvt_pk_bf16_f32 v{d}, v{c}, v{c+1}')
        A(f'    v_cvt_pk_bf16_f32 v{d+1}, v{c+2}, v{c+3}')
        A(f'    ds_write_b64 v11, v[{d}:{d+1}] offset:{a*16*RS + T*32}')
A('    s_waitcnt lgkmcnt(0)')
A('L_store:')
A('    s_barrier')
A(f'''    s_lshl_b32 s55, s50, 8
    s_mul_i32 s55, s55, 7168
    s_mul_i32 s56, s51, 224
    s_add_u32 s55, s55, s56
    s_mov_b32 s57, 7168
    s_movk_i32 s58, {RS}''')
for i in range(7):
    A(f'''    v_add_u32 v16, {512*i}, v0
    v_mul_u32_u24 v17, 18725, v16
    v_lshrrev_b32 v17, 18, v17      ; row = q/14
    v_mul_u32_u24 v18, 14, v17
    v_sub_u32 v18, v16, v18         ; c
    v_lshlrev_b32 v18, 4, v18
    v_mad_u32_u24 v19, v17, s58, v18
    v_mad_u32_u24 v{20+i}, v17, s57, v18
    ds_read_b128 v[{32+4*i}:{35+4*i}], v19''')
for i in range(7):
    A(f'    s_waitcnt lgkmcnt({6-i})')
    A(f'    buffer_store_dwordx4 v[{32+4*i}:{35+4*i}], v{20+i}, s[32:35], s55 offen')
if opt['stamp']:
    A('    s_waitcnt vmcnt(0)')
    stamp()
    A('    s_waitcnt lgkmcnt(0)')
    A('    s_cmp_lg_u32 s2, 0\n    s_cbranch_scc1 L_done\n    s_cmp_lg_u32 s52, 0\n    s_cbranch_scc1 L_done')
    for k in range(1, stamp_n[0]):
        A(f'    s_sub_u32 s{70+2*k}, s{70+2*k}, s70')
        A(f'    s_sub_u32 s{84+2*k}, s{84+2*k}, s84')
    for k in range(1, stamp_n[0]):
        A(f'    v_mov_b32 v20, s{70+2*k}')
        A(f'    v_mov_b32 v21, {4*k}')
        A(f'    buffer_store_dword v20, v21, s[36:39], 0 offen')
        A(f'    v_mov_b32 v22, s{84+2*k}')
        A(f'    buffer_store_dword v22, v21, s[36:39], 0 offen offset:32')
A('    s_endpgm')

A('''L_producer:
    s_sub_u32 s61, s52, 4           ; p
    v_lshrrev_b32 v8, 3, v2         ; r = l>>3
    v_and_b32 v9, 7, v2
    v_lshrrev_b32 v10, 1, v8
    v_xor_b32 v9, v9, v10
    s_lshl_b32 s53, s50, 8
    s_lshl_b32 s54, s61, 6
    s_add_u32 s53, s53, s54
    v_add_u32 v8, s53, v8
    v_lshlrev_b32 v8, 11, v8
    v_lshl_add_u32 v3, v9, 4, v8
    v_xor_b32 v4, 64, v3
    v_cmp_le_u32 vcc, 28, v2
    v_subrev_u32 v8, 28, v2
    s_nop 0
    v_cndmask_b32 v8, v2, v8, vcc
    v_cndmask_b32 v9, 0, 1, vcc     ; kb
    v_cmp_gt_u32 vcc, 56, v2
    v_lshrrev_b32 v10, 1, v8
    v_add_u32 v10, 14, v10
    v_cndmask_b32 v8, v10, v8, vcc
    s_lshl_b32 s54, s61, 4
    v_lshl_add_u32 v10, v9, 3, s54
    s_mov_b32 s55, 14336
    v_mul_lo_u32 v10, v10, s55
    v_lshl_add_u32 v10, v8, 4, v10
    s_mul_i32 s55, s51, 448
    v_add_u32 v5, s55, v10
    v_mov_b32 v11, 0x7ff00000
    v_cndmask_b32 v5, v11, v5, vcc
    s_mul_i32 s55, s51, 224
    v_lshl_add_u32 v12, v8, 3, s55
    v_cndmask_b32 v12, v11, v12, vcc
    s_lshl_b32 s54, s61, 1
    v_add_u32 v10, s54, v9          ; o
    v_lshlrev_b32 v11, 1, v8
    v_and_b32 v11, 7, v11
    v_xor_b32 v10, v10, v11
    v_lshlrev_b32 v10, 4, v10
    v_lshl_add_u32 v10, v8, 9, v10''')
A(f'    v_add_u32 v6, {WBASE}, v10')
A('''    v_xor_b32 v7, 16, v6
    s_lshl_b32 s58, s61, 13         ; p*8192
    s_mov_b32 s56, 0                ; x soffset
    s_mov_b32 s57, 0                ; W soffset
    s_mov_b32 s62, 0
    s_mov_b32 s59, 0''')

def batch(pos):
    g = []
    qs = 64 + 16 * pos
    if pos % 2 == 0:
        sr = 16 + 4 * (pos // 2)
        g.append([f'    buffer_load_dwordx2 v[{sr}:{sr+1}], v12, s[24:27], s62 offen'])
        g.append([f'    buffer_load_dwordx2 v[{sr+2}:{sr+3}], v12, s[28:31], s62 offen', '    s_add_u32 s62, s62, 7168'])
    for i in range(8):
        g.append([f'    s_add_u32 s63, s57, {i*14336}',
                  f'    buffer_load_format_d16_xyzw v[{qs+2*i}:{qs+2*i+1}], v5, s[20:23], s63 offen'])
        g.append([f'    s_add_u32 m0, s58, {pos*XST + i*1024}',
                  f'    s_add_u32 s63, s56, {i*8*2048}',
                  f'    buffer_load_dwordx4 v{3 + (i & 1)}, s[16:19], s63 offen lds'])
    g[-1] = g[-1] + ['    s_add_u32 s56, s56, 128', '    s_add_u32 s57, s57, 917504', '    s_add_u32 s59, s59, 1',
                     '    s_cmp_lt_u32 s59, 16', '    s_cselect_b32 s18, s18, 0', '    s_cselect_b32 s22, s22, 0',
                     '    s_cselect_b32 s26, s26, 0', '    s_cselect_b32 s30, s30, 0']
    return g
def bsize(pos): return 18 if pos % 2 == 0 else 16

def dequant(pos):
    l = []
    qs = 64 + 16 * pos
    ws = pos % 2
    if pos % 2 == 0:
        sr = 16 + 4 * (pos // 2); zr = sr + 2
        l += [f'    v_lshlrev_b32 v48, 16, v{sr}', f'    v_and_b32 v49, 0xffff0000, v{sr}',
              f'    v_lshlrev_b32 v50, 16, v{sr+1}', f'    v_and_b32 v51, 0xffff0000, v{sr+1}',
              f'    v_lshlrev_b32 v52, 16, v{zr}', f'    v_and_b32 v53, 0xffff0000, v{zr}',
              f'    v_lshlrev_b32 v54, 16, v{zr+1}', f'    v_and_b32 v55, 0xffff0000, v{zr+1}']
        l += [f'    v_mul_f32_e64 v{52+c}, -v{52+c}, v{48+c}' for c in range(4)]
        l += [f'    v_mul_f32 v{48+c}, 0x4b800000, v{48+c}' for c in range(4)]
    for c in range(4):
        for j in range(8):
            q = qs + 2 * j + (c >> 1)
            l.append(f'    v_fma_mix_f32 v{128+j}, v{q}, v{48+c}, v{52+c} op_sel:[{c&1},0,0] op_sel_hi:[1,0,0]')
        ob = 136 + 4 * (c & 1)
        for j in range(4):
            l.append(f'    v_cvt_pk_bf16_f32 v{ob+j}, v{128+2*j}, v{129+2*j}')
        l.append(f'    ds_write_b128 v{6 + (c >> 1)}, v[{ob}:{ob+3}] offset:{ws*WST + c*128}')
    return l

for pos in range(3):
    for g in batch(pos):
        for x in g: A(x)
A(f'    s_waitcnt vmcnt({bsize(1) + bsize(2)})')
for x in dequant(0): A(x)
A('    s_waitcnt lgkmcnt(0)\n    s_barrier     ; B_0')
A('    s_mov_b32 s60, 0')
A('L_p_loop:')
for u in range(4):
    dp = (u + 1) % 4; ip = (u + 3) % 4
    A(f'    s_waitcnt vmcnt({bsize((u + 2) % 4)})')
    gs = batch(ip); dq = dequant(dp)
    per = (len(dq) + len(gs) - 1) // len(gs) if opt['vpm'] == 0 else opt['vpm']
    di = 0
    for g in gs:
        for x in g: A(x)
        for x in dq[di:di + per]: A(x)
        di += per
    for x in dq[di:]: A(x)
    A('    s_waitcnt lgkmcnt(0)\n    s_barrier')
A('    s_add_u32 s60, s60, 1\n    s_cmp_lt_u32 s60, 4\n    s_cbranch_scc1 L_p_loop')
A('    s_waitcnt vmcnt(0)\n    s_barrier\n    s_branch L_store')
A('L_done:\n    s_endpgm')
A(epilogue(256, 100))
open(OUT, 'w').write('\n'.join(o))
```
